```python
import torch

def _softmax(x, axis=-1):
    return torch.softmax(x, dim=axis)
def _gelu(x):
    return torch.nn.functional.gelu(x, approximate="tanh")
def _silu(x):
    return torch.nn.functional.silu(x)
def _sigmoid(x):
    return torch.sigmoid(x)
def _layernorm(x, axis=-1, eps=1e-5):
    m = x.mean(dim=axis, keepdim=True)
    v = x.var(dim=axis, keepdim=True, unbiased=False)
    return (x - m) / torch.sqrt(v + eps)
def _scatter_add(tgt, idx, src, axis=0):
    return tgt.clone().index_add_(axis, idx, src)
def _segment_sum(src, seg, n):
    out = torch.zeros((n,) + src.shape[1:], dtype=src.dtype)
    return out.index_add_(0, seg, src)
def _pad(x, pw):
    flat = tuple(v for pair in reversed(pw) for v in pair)
    return torch.nn.functional.pad(x, flat)

kernel_name = 'recurrent_scan__compressed_kv_cla__mixer_s_mlp__prompt'

def setup_inputs():

    _w = (lambda a: (lambda t: t.to(torch.bfloat16) if t.is_floating_point() else t)(torch.as_tensor(a)))
    def _A_setup():
        B, H, Sq, Sk, D, M = 1, 32, 2048, 2048, 128, 512
        Dc = 4 * D
        return {
            "x": _w((lambda *s: torch.randn(*s, dtype=torch.bfloat16) * 0.05)(B, Sq, M)),
            "c_kv": _w((lambda *s: torch.randn(*s, dtype=torch.bfloat16) * 0.2)(B, Sk, Dc)),
            "w_q": _w((lambda *s: torch.randn(*s, dtype=torch.bfloat16) * 3.2)(M, H, D) * (M ** -0.5)),
            "w_uk": _w((lambda *s: torch.randn(*s, dtype=torch.bfloat16) * 3.2)(Dc, H, D) * (Dc ** -0.5)),
            "w_uv": _w((lambda *s: torch.randn(*s, dtype=torch.bfloat16) * 0.2)(Dc, H, D) * (Dc ** -0.5)),
            "w_o": _w((lambda *s: torch.randn(*s, dtype=torch.bfloat16) * 0.2)(H, D, M) * ((H * D) ** -0.5)),
        }
    _A_in = _A_setup()

    def _B_setup():
        B, S, D, F = 1, 2048, 512, 1376
        return {
            "x":  _w((lambda *s: torch.randn(*s, dtype=torch.bfloat16) * 0.05)(B, S, D)),
            "w1": _w((lambda *s: torch.randn(*s, dtype=torch.bfloat16) * 3.2)(D, D) * (D ** -0.5)),
            "w2": _w((lambda *s: torch.randn(*s, dtype=torch.bfloat16) * 3.2)(D, D) * (D ** -0.5)),
            "w3": _w((lambda *s: torch.randn(*s, dtype=torch.bfloat16) * 3.2)(D, F) * (D ** -0.5)),
            "w4": _w((lambda *s: torch.randn(*s, dtype=torch.bfloat16) * 1.6)(F, D) * (F ** -0.5)),
        }
    _B_in = _B_setup()

    return {
        "A_x": _A_in["x"],
        "A_c_kv": _A_in["c_kv"],
        "A_w_q": _A_in["w_q"],
        "A_w_uk": _A_in["w_uk"],
        "A_w_uv": _A_in["w_uv"],
        "A_w_o": _A_in["w_o"],
        "B_x": _B_in["x"],
        "B_w1": _B_in["w1"],
        "B_w2": _B_in["w2"],
        "B_w3": _B_in["w3"],
        "B_w4": _B_in["w4"],
    }

def reference(A_x, A_c_kv, A_w_q, A_w_uk, A_w_uv, A_w_o, B_x, B_w1, B_w2, B_w3, B_w4):
    def _A_ref(x, c_kv, w_q, w_uk, w_uv, w_o):
        B, Sq, M = x.shape[0], x.shape[1], x.shape[2]
        Sk = c_kv.shape[1]
        H, D = w_q.shape[1], w_q.shape[2]
        q = torch.einsum("bqm,mhd->bhqd", x, w_q)
        k = torch.einsum("bkc,chd->bhkd", c_kv, w_uk)
        v = torch.einsum("bkc,chd->bhkd", c_kv, w_uv)
        scores = torch.einsum("bhqd,bhkd->bhqk", q, k) * (D ** -0.5)
        off = Sk - Sq
        qi = torch.arange(Sq)[:, None]
        kj = torch.arange(Sk)[None, :]
        cmask = kj <= (qi + off)
        scores = torch.where(cmask[None, None], scores, -1e9)
        p = _softmax(scores, axis=-1)
        ctx = torch.einsum("bhqk,bhkd->bhqd", p, v)
        return torch.einsum("bhqd,hdm->bqm", ctx, w_o)

    def _B_ref(x, w1, w2, w3, w4):
        B, S, D = x.shape
        h = _gelu(_layernorm(x, axis=-1) @ w1)
        c = D // 4
        g0 = _pad(h[:, :, 0*c:1*c], ((0, 0), (1, 0), (0, 0)))[:, :S, :]
        g1 = _pad(h[:, :, 1*c:2*c], ((0, 0), (0, 1), (0, 0)))[:, 1:, :]
        g2 = _pad(h[:, :, 2*c:3*c], ((0, 0), (2, 0), (0, 0)))[:, :S, :]
        g3 = _pad(h[:, :, 3*c:   ], ((0, 0), (0, 2), (0, 0)))[:, 2:, :]
        hs = torch.concatenate([g0, g1, g2, g3], axis=-1) @ w2
        x1 = x + hs
        h2 = _gelu(_layernorm(x1, axis=-1) @ w3) @ w4
        return x1 + h2

    x = A_x
    xn = _layernorm(x, axis=-1)
    s = _A_ref(xn, A_c_kv, A_w_q, A_w_uk, A_w_uv, A_w_o)
    g = _silu(_B_ref(xn, B_w1, B_w2, B_w3, B_w4))
    return x + s * g
```

```python
class Asm:
    def __init__(self):
        self.L = []
        self._lab = 0
    def e(self, s):
        for ln in s.split("\n"):
            self.L.append("  " + ln.strip() if ln.strip() and not ln.strip().endswith(":") else ln.strip())
    def lab(self, name):
        self.L.append(name + ":")
    def newlab(self, p="L"):
        self._lab += 1
        return f"{p}_{self._lab}"
    def text(self):
        return "\n".join(self.L) + "\n"

def vr(b, n=1):
    return f"v{b}" if n == 1 else f"v[{b}:{b+n-1}]"
def sr(b, n=1):
    return f"s{b}" if n == 1 else f"s[{b}:{b+n-1}]"

def kernel_header(a, name):
    a.L.append(f".globl {name}")
    a.L.append(".p2align 8")
    a.L.append(f".type {name},@function")
    a.L.append(f"{name}:")

def kernel_desc(name, vgpr, sgpr=102, accum=None):
    accum = accum if accum is not None else min(256, (vgpr + 3) // 4 * 4)
    return f""".p2align 6
.amdhsa_kernel {name}
  .amdhsa_next_free_vgpr {vgpr}
  .amdhsa_next_free_sgpr {sgpr}
  .amdhsa_accum_offset {accum}
  .amdhsa_group_segment_fixed_size 0
  .amdhsa_kernarg_size 112
  .amdhsa_user_sgpr_count 2
  .amdhsa_user_sgpr_kernarg_segment_ptr 1
  .amdhsa_system_sgpr_workgroup_id_x 1
.end_amdhsa_kernel
"""

def srd(a, s, base, nbytes, off=0):
    if off:
        a.e(f"s_add_u32 s{s}, s{base}, {off:#x}")
        a.e(f"s_addc_u32 s{s+1}, s{base+1}, 0")
    else:
        a.e(f"s_mov_b32 s{s}, s{base}")
        a.e(f"s_mov_b32 s{s+1}, s{base+1}")
    a.e(f"s_mov_b32 s{s+2}, {nbytes:#x}")
    a.e(f"s_mov_b32 s{s+3}, 0x00020000")

MFMA = "v_mfma_f32_32x32x16_bf16"
def mfma(d, a_, b_, c=None):
    c = d if c is None else c
    cs = c if isinstance(c, str) else vr(c, 16)
    return f"{MFMA} {vr(d,16)}, {vr(a_,4)}, {vr(b_,4)}, {cs}"

ARG = dict(x=0, ckv=8, wq=16, wuk=24, wuv=32, wo=40, bx=48, w1=56, w2=64, w3=72, w4=80, out=88, dbg=96, ws=104)

MB = 1 << 20
WS_KV = 0
WS_XNF = 32 * MB
WS_R2 = 34 * MB
WS_CS3 = 34 * MB + 65536
WS_ST = 34 * MB + 131072
WS_CTX = 36 * MB
WS_H = 52 * MB
WS_X1 = 54 * MB
WS_U = 56 * MB
WS_XN = 64 * MB

import struct
def f2u(x): return struct.unpack("<I", struct.pack("<f", x))[0]
LOG2E = 1.4426950408889634
GELU_C0 = -2.0 * 0.7978845608028654 * LOG2E
GELU_C1 = GELU_C0 * 0.044715

def gelu_ops(e, xs, tmp, vC0, vC1):
    for x, t in zip(xs, tmp): e(f"v_mul_f32 v{t}, v{x}, v{x}")
    for x, t in zip(xs, tmp): e(f"v_fma_f32 v{t}, v{t}, v{vC1}, v{vC0}")
    for x, t in zip(xs, tmp): e(f"v_mul_f32 v{t}, v{t}, v{x}")
    for x, t in zip(xs, tmp): e(f"v_exp_f32 v{t}, v{t}")
    e("s_nop 0")
    for x, t in zip(xs, tmp): e(f"v_add_f32 v{t}, 1.0, v{t}")
    for x, t in zip(xs, tmp): e(f"v_rcp_f32 v{t}, v{t}")
    e("s_nop 0")
    for x, t in zip(xs, tmp): e(f"v_mul_f32 v{x}, v{x}, v{t}")

def xreduce(e, v, t, steps):
    for st in steps:
        if st in ("r4", "r8"):
            e(f"s_nop 1\nv_add_f32_dpp v{v}, v{v}, v{v} row_ror:{st[1]} row_mask:0xf bank_mask:0xf")
        else:
            e(f"v_mov_b32 v{t}, v{v}\ns_nop 1\nv_permlane{st[1:]}_swap_b32 v{v}, v{t}\ns_nop 1\nv_add_f32 v{v}, v{v}, v{t}")
```

```python
from asmlib import *

def gen_k1(a, name="kv_kernel"):
    kernel_header(a, name)
    e = a.e
    done = name + "_done"
    sA, sW, sO = 8, 12, 16
    sWv = 20
    sIsV, sTmp, sTmp2 = 21, 22, 23
    sAoff, sWoff, sLw = 24, 25, 26
    sOoff = 27
    e(f"s_cmp_ge_u32 s2, 256\ns_cbranch_scc1 {done}")
    e(f"s_load_dwordx2 s[4:5], s[0:1], {ARG['ckv']}")
    e(f"s_load_dwordx4 s[28:31], s[0:1], {ARG['wuk']}")
    e(f"s_load_dwordx2 s[6:7], s[0:1], {ARG['ws']}")
    e("v_lshrrev_b32 v1, 6, v0\nv_and_b32 v2, 63, v0")
    e(f"s_nop 0\nv_readfirstlane_b32 s{sWv}, v1")
    e("s_lshr_b32 s32, s2, 5")
    e("s_and_b32 s33, s2, 31")
    e(f"s_cmp_ge_u32 s33, 16\ns_cselect_b32 s{sIsV}, 1, 0")
    e("s_and_b32 s34, s33, 15")
    e("s_waitcnt lgkmcnt(0)")
    srd(a, sA, 4, 2 * MB)
    e(f"s_cmp_eq_u32 s{sIsV}, 1\ns_cselect_b32 s36, s30, s28\ns_cselect_b32 s37, s31, s29")
    srd(a, sW, 36, 4 * MB)
    srd(a, sO, 6, 32 * MB, WS_KV)
    vAe, vAo, vWe, vWo = 3, 4, 5, 6
    t0, t1, t2 = 7, 8, 9
    e(f"v_lshrrev_b32 v{t0}, 3, v2\nv_lshlrev_b32 v{t0}, 10, v{t0}")
    e(f"v_and_b32 v{t1}, 7, v2\nv_lshrrev_b32 v{t2}, 4, v2\nv_xor_b32 v{t1}, v{t1}, v{t2}")
    e(f"v_lshl_add_u32 v{vAe}, v{t1}, 4, v{t0}")
    e(f"v_xor_b32 v{t1}, 4, v{t1}\nv_lshl_add_u32 v{vAo}, v{t1}, 4, v{t0}\nv_add_u32 v{vAo}, {8192-1024}, v{vAo}")
    e(f"v_lshrrev_b32 v{t0}, 5, v2")
    e(f"v_and_b32 v{t1}, 31, v2")
    e(f"v_lshlrev_b32 v{t2}, 2, v{t0}\nv_xor_b32 v{t2}, v{t2}, v{t1}")
    e(f"v_lshlrev_b32 v{t0}, 13, v{t0}")
    e(f"v_lshl_add_u32 v{vWe}, v{t2}, 4, v{t0}")
    e(f"v_xor_b32 v{t2}, 8, v{t2}\nv_lshl_add_u32 v{vWo}, v{t2}, 4, v{t0}\nv_add_u32 v{vWo}, {2*8192-1024}, v{vWo}")
    e(f"s_lshl_b32 s{sLw}, s{sWv}, 11")
    e(f"s_lshl_b32 s{sAoff}, s32, 18\ns_lshl_b32 s{sTmp}, s{sWv}, 14\ns_add_u32 s{sAoff}, s{sAoff}, s{sTmp}")
    e(f"s_lshl_b32 s{sWoff}, s34, 9\ns_lshl_b32 s{sTmp}, s{sWv}, 15\ns_add_u32 s{sWoff}, s{sWoff}, s{sTmp}")
    LA, LW = 0, 96 * 1024
    vRA = [10, 11, 12, 13, 14, 15, 16, 17]
    vRW = [18, 19]
    e(f"v_and_b32 v{t0}, 31, v2\nv_lshrrev_b32 v{t1}, 5, v2")
    e(f"v_bfe_u32 v{t2}, v2, 1, 3")
    e(f"v_xor_b32 v{t2}, v{t2}, v{t1}")
    e(f"s_lshr_b32 s{sTmp}, s{sWv}, 2\ns_lshl_b32 s{sTmp}, s{sTmp}, 14")
    e(f"v_lshlrev_b32 v{t0}, 7, v{t0}\nv_add_u32 v{t0}, s{sTmp}, v{t0}")
    for ks in range(4):
        e(f"v_xor_b32 v{t1}, {2*ks}, v{t2}\nv_lshl_add_u32 v{vRA[ks]}, v{t1}, 4, v{t0}")
        e(f"v_add_u32 v{vRA[4+ks]}, 0x10000, v{vRA[ks]}")
    e(f"v_bfe_u32 v{t0}, v2, 2, 2")
    e(f"v_lshrrev_b32 v{t1}, 5, v2\nv_lshl_add_u32 v{t1}, v{t1}, 3, v{t0}\nv_lshlrev_b32 v{t1}, 9, v{t1}")
    e(f"v_bfe_u32 v{t2}, v2, 4, 1\nv_lshl_add_u32 v{t1}, v{t2}, 5, v{t1}")
    e(f"v_and_b32 v{t2}, 3, v2\nv_lshl_add_u32 v{t1}, v{t2}, 3, v{t1}")
    e(f"s_and_b32 s{sTmp}, s{sWv}, 3\ns_lshl_b32 s{sTmp}, s{sTmp}, 1")
    for b in range(2):
        e(f"s_add_u32 s{sTmp2}, s{sTmp}, {b}\nv_xor_b32 v{t2}, s{sTmp2}, v{t0}\nv_lshl_add_u32 v{vRW[b]}, v{t2}, 6, v{t1}")
        e(f"v_add_u32 v{vRW[b]}, {LW}, v{vRW[b]}")
    e(f"s_and_b32 s{sTmp}, s{sWv}, 3\ns_lshr_b32 s{sTmp2}, s{sTmp}, 1\ns_lshl_b32 s{sOoff}, s34, 1\ns_add_u32 s{sOoff}, s{sOoff}, s{sTmp2}")
    e(f"s_lshl_b32 s{sOoff}, s{sOoff}, 6\ns_lshl_b32 s{sTmp2}, s32, 3\ns_add_u32 s{sOoff}, s{sOoff}, s{sTmp2}")
    e(f"s_lshr_b32 s{sTmp2}, s{sWv}, 2\ns_lshl_b32 s{sTmp2}, s{sTmp2}, 2\ns_add_u32 s{sOoff}, s{sOoff}, s{sTmp2}")
    e(f"s_lshl_b32 s{sOoff}, s{sOoff}, 4\ns_lshl_b32 s{sTmp2}, s{sIsV}, 3\ns_add_u32 s{sOoff}, s{sOoff}, s{sTmp2}")
    e(f"s_and_b32 s{sTmp}, s{sTmp}, 1\ns_lshl_b32 s{sTmp}, s{sTmp}, 2\ns_add_u32 s{sOoff}, s{sOoff}, s{sTmp}")
    e(f"s_lshl_b32 s{sOoff}, s{sOoff}, 10")
    vOut = 20
    e(f"v_lshlrev_b32 v{vOut}, 4, v2")

    ACC = 128
    FA = [64, 64 + 24]
    def acc(rb, nb_): return ACC + (rb * 2 + nb_) * 16
    for r in range(ACC, ACC + 128):
        e(f"v_mov_b32 v{r}, 0")

    q = []
    def dmaA(c, half):
        slot = c % 3
        e(f"s_add_u32 m0, s{sLw}, {LA + slot*32768 + half*16384}")
        e(f"s_add_u32 s{sTmp}, s{sAoff}, {half*16*8192 + c*128}")
        e(f"buffer_load_dwordx4 v{vAe}, s[{sA}:{sA+3}], s{sTmp} offen lds")
        e(f"buffer_load_dwordx4 v{vAo}, s[{sA}:{sA+3}], s{sTmp} offen offset:1024 lds")
        q.extend([("A", c)] * 2)
    def dmaW(c):
        slot = c % 4
        e(f"s_add_u32 m0, s{sLw}, {LW + slot*16384}")
        e(f"s_add_u32 s{sTmp2}, s{sWoff}, {c*32*8192}")
        e(f"buffer_load_dwordx4 v{vWe}, s[{sW}:{sW+3}], s{sTmp2} offen lds")
        e(f"buffer_load_dwordx4 v{vWo}, s[{sW}:{sW+3}], s{sTmp2} offen offset:1024 lds")
        q.extend([("W", c)] * 2)
    def wait_for(need):
        last = max([i for i, tg in enumerate(q) if tg in need], default=-1)
        if last < 0: return
        n = len(q) - 1 - last
        e(f"s_waitcnt vmcnt({n})")
    def reads(step, fs):
        t, ks2 = step // 2, step % 2
        c, ksA = t // 2, (t % 2) * 2 + ks2
        out = []
        for rb in range(4):
            off = LA + (c % 3) * 32768 + rb * 4096
            reg = vRA[ksA] if off < 65536 else vRA[4 + ksA]
            off = off if off < 65536 else off - 65536
            out.append(f"ds_read_b128 {vr(FA[fs] + rb*4, 4)}, v{reg} offset:{off}")
        for b in range(2):
            for rd in range(2):
                off = (t % 4) * 16384 + ks2 * 16 * 512 + rd * 4 * 512
                out.append(f"ds_read_b64_tr_b16 {vr(FA[fs] + 16 + b*4 + rd*2, 2)}, v{vRW[b]} offset:{off}")
        return out

    def body(isV):
        del q[:]
        dmaA(0, 0); dmaA(0, 1); dmaW(0); dmaW(1); dmaA(1, 0); dmaA(1, 1); dmaW(2)
        wait_for({("A", 0), ("W", 0)})
        e("s_barrier")
        for ins in reads(0, 0): e(ins)
        for t in range(16):
            need = {("A", (t + 1) // 2), ("W", t + 1)}
            wait_for(need)
            e("s_barrier")
            for ks2 in range(2):
                step = 2 * t + ks2
                fs = step % 2
                e("s_waitcnt lgkmcnt(0)")
                nxt = reads(step + 1, 1 - fs) if step + 1 < 32 else []
                extra = []
                if ks2 == 0 and t + 3 < 16: extra.append(lambda: dmaW(t + 3))
                if ks2 == 1 and t // 2 + 2 < 8: extra.append(lambda: dmaA(t // 2 + 2, t % 2))
                m = 0
                for rb in range(4):
                    for b in range(2):
                        fa, fw = FA[fs] + rb * 4, FA[fs] + 16 + b * 4
                        e(mfma(acc(rb, b), fa, fw) if isV else mfma(acc(rb, b), fw, fa))
                        if m < len(nxt): e(nxt[m])
                        if m == 4 and extra: extra[0]()
                        m += 1
        e("s_nop 15")
        pk = 64
        for rb in range(4):
            for b in range(2):
                for tt in range(2):
                    d = pk + ((rb * 2 + b) * 2 + tt) % 8 * 4
                    for j in range(4):
                        s = acc(rb, b) + tt * 8 + 2 * j
                        e(f"v_cvt_pk_bf16_f32 v{d+j}, v{s}, v{s+1}")
                    off = (rb * 16 + 2 * b + tt) * 1024
                    e(f"s_add_u32 s{sTmp}, s{sOoff}, {off}")
                    e(f"buffer_store_dwordx4 {vr(d,4)}, v{vOut}, s[{sO}:{sO+3}], s{sTmp} offen")
                    if ((rb * 2 + b) * 2 + tt) % 8 == 7:
                        e("s_waitcnt vmcnt(4)")
    lv = name + "_V"
    e(f"s_cmp_eq_u32 s{sIsV}, 1\ns_cbranch_scc1 {lv}")
    body(False)
    e("s_endpgm")
    a.lab(lv)
    body(True)
    a.lab(done)
    e("s_endpgm")
    return kernel_desc(name, 256)
```

```python
from asmlib import *

vLane16, vR, vMq, vNeg = 1, 2, 7, 8
vLp = [3, 4]
vTch, vDum = 5, 6
vT0, vT1, vT2, vT3 = 9, 10, 11, 12
F, O, T, Q = 16, 48, 112, 128
S = [160, 176]
P = [192, 200]
MN = 208
XN = 128
sKV, sXN, sWQ, sCX, sKVL = 8, 12, 16, 20, 24
sWv, sHead, sI, sJ, sN, sPos, sThr = 28, 29, 30, 31, 32, 33, 34
sLds, sG, sG2, sB, sBL, sTmp, sTmp2, sLw, sQb = 35, 36, 37, 38, 39, 40, 41, 42, 43
sW1k, sPf = 44, 45
import os
STAGE0 = int(os.environ.get("STAGE0", 2)); KLOAD_AT = int(os.environ.get("KLOAD_AT", 1))
PFD = int(os.environ.get("PFD", 0)); HEADMAP = int(os.environ.get("HEADMAP", 0))
NODMA = int(os.environ.get("NODMA", 0)); NOBAR = int(os.environ.get("NOBAR", 0)); NOSM = int(os.environ.get("NOSM", 0)); NORD = int(os.environ.get("NORD", 0))
sMask = 64

def Ks(r): return r * 16384
def Vs(r): return r * 16384 + 8192
PIECE = [Vs(3), Vs(4), Vs(5), Ks(4), Ks(5), Vs(0), Vs(1), Vs(2), Ks(6), Ks(7), Vs(6), Vs(7),
         131072, 131072 + 8192, 131072 + 16384, 131072 + 24576]
QSCALE = 1.4426950408889634 / (128 ** 0.5)

import struct
def f2u(x): return struct.unpack("<I", struct.pack("<f", x))[0]

def sm_stream(par):
    s, p = S[par], P[par]
    lo, ln_ = vLp[par], vLp[1 - par]
    def ex(k): return (f"v_exp_f32 v{T + k % 8}, v{s + k}", 2)
    def cv(k): return (f"v_cvt_pk_bf16_f32 v{p + k}, v{T + (2*k) % 8}, v{T + (2*k) % 8 + 1}", 1)
    def ad(k): return (f"v_add_f32 v{ln_}, v{lo if k == 0 else ln_}, v{T + k % 8}", 1)
    out = [ex(0), ex(1), ad(0)]
    for k in range(1, 8):
        out += [ex(2 * k), ad(2 * k - 1), cv(k - 1), ex(2 * k + 1), ad(2 * k)]
    out += [("s_nop 0", 0), ad(15), cv(7)]
    return out

def spread(stream, gaps):
    tot = sum(w for _, w in stream)
    b = [[] for _ in range(gaps)]
    acc = 0
    for ins, w in stream:
        g = min(gaps - 1, int(acc * gaps / tot))
        b[g].append(ins)
        acc += w
    return b

def gen_k2(a, name="attn_kernel", dbg=False):
    kernel_header(a, name)
    e = a.e
    done = name + "_done"
    e(f"s_cmp_ge_u32 s2, 256\ns_cbranch_scc1 {done}")
    if dbg: e("s_memtime s[46:47]")
    e(f"s_load_dwordx2 s[4:5], s[0:1], {ARG['ws']}")
    e(f"s_load_dwordx2 s[6:7], s[0:1], {ARG['wq']}")
    e("v_lshrrev_b32 v15, 6, v0\nv_and_b32 v14, 63, v0")
    if HEADMAP:
        e(f"s_and_b32 s{sHead}, s2, 7\ns_lshl_b32 s{sHead}, s{sHead}, 1\ns_bfe_u32 s{sTmp}, s2, 0x10003\ns_add_u32 s{sHead}, s{sHead}, s{sTmp}")
        e(f"s_and_b32 s{sTmp}, s2, 16\ns_add_u32 s{sHead}, s{sHead}, s{sTmp}\ns_lshr_b32 s{sI}, s2, 5")
    else:
        e(f"s_and_b32 s{sHead}, s2, 31\ns_lshr_b32 s{sI}, s2, 5")
    e(f"v_readfirstlane_b32 s{sWv}, v15")
    e(f"v_lshlrev_b32 v{vLane16}, 4, v14")
    e(f"s_mov_b32 s{sThr}, {f2u(2.0**30):#x}")
    e(f"s_lshl_b32 s{sTmp}, s{sI}, 2")
    e(f"s_sub_u32 s{sTmp2}, 60, s{sTmp}\ns_add_u32 s{sTmp2}, s{sTmp2}, s{sWv}")
    e(f"s_add_u32 s{sJ}, s{sTmp}, 7\ns_sub_u32 s{sJ}, s{sJ}, s{sWv}")
    e(f"s_cmp_lt_u32 s{sWv}, 4\ns_cselect_b32 s{sJ}, s{sTmp2}, s{sJ}")
    e(f"s_lshl_b32 s{sBL}, s{sI}, 1\ns_sub_u32 s{sBL}, 32, s{sBL}")
    e(f"s_and_b32 s{sLw}, s{sWv}, 3")
    e(f"s_lshl_b32 s{sW1k}, s{sWv}, 10")
    e("s_waitcnt lgkmcnt(0)")
    e(f"s_lshl_b32 s{sTmp}, s{sHead}, 20")
    e(f"s_add_u32 s{sKV}, s4, s{sTmp}\ns_addc_u32 s{sKV+1}, s5, 0")
    if WS_KV:
        e(f"s_add_u32 s{sKV}, s{sKV}, {WS_KV:#x}\ns_addc_u32 s{sKV+1}, s{sKV+1}, 0")
    e(f"s_lshl_b32 s{sTmp}, s{sI}, 16\ns_sub_u32 s{sKV+2}, {MB:#x}, s{sTmp}")
    e(f"s_mov_b32 s{sKV+3}, 0x00020000")
    srd(a, sXN, 4, 2 * MB, WS_XNF)
    srd(a, sWQ, 6, 4 * MB)
    srd(a, sCX, 4, 16 * MB, WS_CTX)
    e(f"v_and_b32 v{vT0}, 31, v14\nv_lshrrev_b32 v{vT1}, 5, v14\nv_lshlrev_b32 v{vT1}, 2, v{vT1}")
    e(f"v_sub_u32 v{vMq}, v{vT0}, v{vT1}")
    e(f"v_mov_b32 v{vNeg}, 0xff800000")
    vWq = 13
    e(f"v_lshrrev_b32 v{vT0}, 4, v14\nv_and_b32 v{vT1}, 15, v14")
    e(f"v_lshlrev_b32 v{vT2}, 2, v{vT0}\nv_xor_b32 v{vT1}, v{vT2}, v{vT1}")
    e(f"v_lshlrev_b32 v{vT0}, 13, v{vT0}\nv_lshl_add_u32 v{vWq}, v{vT1}, 4, v{vT0}")
    e(f"s_lshl_b32 s{sTmp}, s{sWv}, 15\ns_lshl_b32 s{sTmp2}, s{sHead}, 8\ns_add_u32 s{sTmp}, s{sTmp}, s{sTmp2}")
    e(f"v_add_u32 v{vWq}, s{sTmp}, v{vWq}")
    vA = 112
    e(f"v_bfe_u32 v{vT0}, v14, 2, 2")
    e(f"v_lshrrev_b32 v{vT1}, 5, v14\nv_lshl_add_u32 v{vT1}, v{vT1}, 2, v{vT0}\nv_lshlrev_b32 v{vT1}, 8, v{vT1}")
    e(f"v_bfe_u32 v{vT2}, v14, 4, 1\nv_lshl_add_u32 v{vT1}, v{vT2}, 5, v{vT1}")
    e(f"v_and_b32 v{vT2}, 3, v14\nv_lshl_add_u32 v{vT1}, v{vT2}, 3, v{vT1}")
    for db in range(4):
        e(f"v_xor_b32 v{vT2}, {db}, v{vT0}\nv_lshl_add_u32 v{vA+db}, v{vT2}, 6, v{vT1}")
        e(f"v_add_u32 v{vA+4+db}, 0x10000, v{vA+db}\nv_add_u32 v{vA+8+db}, 0x20000, v{vA+db}")
    e(f"v_lshlrev_b32 v{vTch}, 6, v14\ns_lshl_b32 s{sTmp}, s{sLw}, 12\nv_add_u32 v{vTch}, s{sTmp}, v{vTch}")
    e(f"s_mov_b32 s{sPf}, {4*16384}")
    lshort = name + "_short"
    e(f"s_cmp_ge_u32 s{sWv}, 4\ns_cbranch_scc1 {lshort}")

    def stamp(k):
        if dbg: e(f"s_memtime s[{46+2*k}:{47+2*k}]")
    def dump_stamps():
        if not dbg: return
        e("s_waitcnt lgkmcnt(0)")
        e(f"s_lshl_b32 s{sTmp}, s2, 3\ns_add_u32 s{sTmp}, s{sTmp}, s{sWv}\ns_lshl_b32 s{sTmp}, s{sTmp}, 6")
        srd(a, sXN, 4, 1 * MB, 128 * MB)
        e("s_mov_b64 exec, 1\nv_mov_b32 v9, 0")
        for k in range(8):
            e(f"v_mov_b32 v10, s{46+2*k}\nbuffer_store_dword v10, v9, s[{sXN}:{sXN+3}], s{sTmp} offen offset:{4*k}")
        e(f"v_mov_b32 v10, s{sJ}\nbuffer_store_dword v10, v9, s[{sXN}:{sXN+3}], s{sTmp} offen offset:32")
        e("s_mov_b64 exec, -1")

    def dma4(m0expr, sg, lean=False):
        out = [m0expr, "s_nop 0"]
        for k in range(4):
            off = f" offset:{k*1024}" if k else ""
            out.append(f"buffer_load_dwordx4 v{vLane16}, s[{sKV}:{sKV+3}], s{sg} offen{off} lds")
        return out
    inloop = [False]
    def dma_g1(): return [] if (NODMA and inloop[0]) else dma4(f"s_mov_b32 m0, s{sLds}", sG)
    def dma_g2():
        if NODMA and inloop[0]: return []
        o = [f"s_add_u32 s{sG2}, s{sG}, 4096"] + dma4(f"s_add_u32 m0, s{sLds}, 4096", sG2)
        o += [f"s_add_u32 s{sLds}, s{sLds}, 32768", f"s_and_b32 s{sLds}, s{sLds}, 0x1ffff", f"s_add_u32 s{sG}, s{sG}, 32768"]
        return o

    def mask(par):
        for r in range(16):
            e(f"v_cmp_ge_i32 s[{sMask+2*r}:{sMask+2*r+1}], v{vMq}, {(r % 4) + 8 * (r // 4)}")
        for r in range(16):
            e(f"v_cndmask_b32 v{S[par]+r}, v{vNeg}, v{S[par]+r}, s[{sMask+2*r}:{sMask+2*r+1}]")

    def rowmax(par, dst, extra=None):
        s = S[par]
        e(f"v_max3_f32 v{dst}, v{s}, v{s+1}, v{s+2}")
        for r in range(3, 15, 2):
            e(f"v_max3_f32 v{dst}, v{dst}, v{s+r}, v{s+r+1}")
        e(f"v_max_f32 v{dst}, v{dst}, v{s+15}")
        if extra is not None: e(f"v_max_f32 v{dst}, v{dst}, v{extra}")
        e(f"v_mov_b32 v{vT3}, v{dst}\ns_nop 1\nv_permlane32_swap_b32 v{dst}, v{vT3}\ns_nop 1")
        e(f"v_max_f32 v{dst}, v{dst}, v{vT3}\nv_ceil_f32 v{dst}, v{dst}")

    def kread(dst, s_): return f"ds_read_b128 {vr(F + dst*4, 4)}, v{vR} offset:{s_*1024}"
    def vread(dst, u): return f"ds_read_b128 {vr(F + dst*4, 4)}, v{vR} offset:{8192 + u*1024}"
    posupd = [f"s_add_u32 s{sPos}, s{sPos}, 16384", f"s_and_b32 s{sPos}, s{sPos}, 0x1ffff"]
    vrupd = f"v_add_u32 v{vR}, s{sPos}, v{vLane16}"

    rare_blocks = []
    def slot(par, pv, dma, check=True, pf=False):
        nm = 16 if pv else 8
        sm = sm_stream(par)
        if NOSM: sm = [("s_nop 0", 1)]
        chk = [(f"v_cmp_nge_f32 vcc, s{sThr}, v{vLp[1-par]}", 1)] if check else []
        gaps = spread(sm + chk, nm - 1) + [[]]
        dm = [[] for _ in range(nm)]
        if dma:
            pos = [1, 3, 3, 6, 9, 12, 14, 14, 14, 14] if nm == 16 else [0, 1, 1, 3, 5, 6, 7, 7, 7, 7]
            if dma[0].startswith("s_add_u32 s%d" % sG2): pos = [0] + pos
            for ins, g in zip(dma, pos):
                if ins != "s_nop 0": dm[g].append(ins)
        if pf:
            dm[4].append(f"buffer_load_dword v{vDum}, v{vTch}, s[{sKV}:{sKV+3}], s{sPf} offen")
            dm[6].append(f"s_add_u32 s{sPf}, s{sPf}, 16384")
        for ins in posupd: e(ins)
        for i in range(nm):
            if i % 2 == 0: e("s_waitcnt lgkmcnt(5)")
            if i < 8:
                e(mfma(S[1 - par], F + i * 4, Q + i * 4, MN if i == 0 else None))
            else:
                u = i - 8
                e(mfma(O + (u // 2) * 16, F + u * 4, P[1 - par] + (u % 2) * 4))
            if NORD:
                if i == 0: e(vrupd)
            elif i == 0:
                e(kread(7, 7)); e(vrupd)
            elif pv and i <= 8: e(vread(i - 1, i - 1))
            elif pv: e(kread(i - 9, i - 9))
            else: e(kread(i - 1, i - 1))
            for ins in dm[i]: e(ins)
            for ins in gaps[i]: e(ins)
        if check:
            rl, bk = a.newlab(name + "_rare"), a.newlab(name + "_back")
            e(f"s_cbranch_vccnz {rl}")
            a.lab(bk)
            rare_blocks.append((rl, bk, par))

    def rare(rl, bk, par):
        a.lab(rl)
        e("s_nop 15\ns_nop 15")
        e(f"v_log_f32 v{vT2}, v{vLp[par]}")
        rowmax(par, vT0, vT2)
        e(f"v_max_f32 v{vT0}, 0, v{vT0}")
        e(f"v_sub_f32 v{vT1}, 0, v{vT0}\nv_cvt_i32_f32 v{vT1}, v{vT1}")
        for r in range(16): e(f"v_sub_f32 v{S[par]+r}, v{S[par]+r}, v{vT0}")
        for r in range(16): e(f"v_sub_f32 v{S[1-par]+r}, v{S[1-par]+r}, v{vT0}")
        for r in range(16): e(f"v_sub_f32 v{MN+r}, v{MN+r}, v{vT0}")
        for r in range(64): e(f"v_ldexp_f32 v{O+r}, v{O+r}, v{vT1}")
        e(f"v_ldexp_f32 v{vLp[par]}, v{vLp[par]}, v{vT1}")
        for ins, _ in sm_stream(par): e(ins)
        e(f"s_nop 1\ns_branch {bk}")

    def pvonly(par):
        for ins in posupd: e(ins)
        e(vrupd)
        for u in range(8): e(vread(u, u))
        for u in range(8):
            e(f"s_waitcnt lgkmcnt({7-u})")
            e(mfma(O + (u // 2) * 16, F + u * 4, P[par] + (u % 2) * 4))

    def epilogue():
        vL = 4
        e(f"v_mov_b32 v{vT0}, v{vL}\ns_nop 1\nv_permlane32_swap_b32 v{vL}, v{vT0}\ns_nop 1")
        e(f"v_add_f32 v{vL}, v{vL}, v{vT0}\nv_rcp_f32 v{vL}, v{vL}")
        e(f"s_lshl_b32 s{sTmp}, s{sJ}, 5\ns_add_u32 s{sTmp}, s{sTmp}, s{sHead}\ns_lshl_b32 s{sTmp}, s{sTmp}, 13")
        e(f"s_add_u32 s{sTmp2}, s{sTmp}, 4096")
        e("s_nop 15")
        for s_ in range(8):
            d = F + s_ * 4
            for j in range(4):
                r = O + s_ * 8 + 2 * j
                e(f"v_mul_f32 v{r}, v{r}, v{vL}\nv_mul_f32 v{r+1}, v{r+1}, v{vL}")
            for j in range(4):
                r = O + s_ * 8 + 2 * j
                e(f"v_cvt_pk_bf16_f32 v{d+j}, v{r}, v{r+1}")
            so = sTmp if s_ < 4 else sTmp2
            off = f" offset:{(s_%4)*1024}" if s_ % 4 else ""
            e(f"buffer_store_dwordx4 {vr(d,4)}, v{vLane16}, s[{sCX}:{sCX+3}], s{so} offen{off}")
        e("s_waitcnt vmcnt(0)")
        stamp(6)
        dump_stamps()
        e("s_waitcnt vmcnt(0)\ns_endpgm")

    def wave_code(short):
        tag = name + ("_s" if short else "_l")
        q = []
        inloop[0] = False
        def wait_for(need):
            last = max([i for i, tg in enumerate(q) if tg in need], default=-1)
            if last < 0: return
            e(f"s_waitcnt vmcnt({len(q) - 1 - last})")
        e(f"s_lshl_b32 s{sQb}, s{sJ}, 15")
        def chunk_loads(c):
            for pc in range(4 * c, 4 * c + 4):
                e(f"s_add_u32 m0, s{sW1k}, {PIECE[pc]}")
                e(f"s_mov_b32 s{sTmp}, {pc * 32 * 8192}")
                e(f"buffer_load_dwordx4 v{vWq}, s[{sWQ}:{sWQ+3}], s{sTmp} offen lds")
                q.append(("W", c))
            for ks in range(8 * c, 8 * c + 8):
                if ks % 4 == 0: e(f"s_add_u32 s{sTmp2}, s{sQb}, {ks * 1024}")
                off = f" offset:{(ks%4)*1024}" if ks % 4 else ""
                e(f"buffer_load_dwordx4 {vr(XN + ks*4, 4)}, v{vLane16}, s[{sXN}:{sXN+3}], s{sTmp2} offen{off}")
                q.append(("X", c))
        def k_loads():
            e(f"s_lshl_b32 s{sLds}, s{sLw}, 14\ns_mov_b32 s{sG}, s{sLds}")
            for ins in dma_g1(): e(ins)
            e(f"s_add_u32 s{sG2}, s{sG}, 4096")
            for ins in dma4(f"s_add_u32 m0, s{sLds}, 4096", sG2): e(ins)
            q.extend([("K", 0)] * 8)
        def touch():
            e(f"buffer_load_dword v{vDum}, v{vTch}, s[{sKV}:{sKV+3}], s{sPf} offen")
            e(f"s_add_u32 s{sPf}, s{sPf}, 16384")
            q.append(("T", 0))
        for c in range(STAGE0): chunk_loads(c)
        for r in range(64): e(f"v_mov_b32 v{O+r}, 0")
        def wreads(i):
            ks, db = i // 4, i % 4
            base = PIECE[ks // 2] + (ks % 2) * 4096
            win = base >> 16
            off = base & 0xffff
            d = F + (i % 8) * 4
            return [f"ds_read_b64_tr_b16 {vr(d,2)}, v{vA + 4*win + db} offset:{off}",
                    f"ds_read_b64_tr_b16 {vr(d+2,2)}, v{vA + 4*win + db} offset:{off + 2048}"]
        for c in range(4):
            wait_for({("X", c)} | ({("K", 0)} if c == 3 else set()))
            e("s_barrier")
            if c == 0: stamp(1)
            if c + STAGE0 < 4: chunk_loads(c + STAGE0)
            if short and c == KLOAD_AT: k_loads()
            if (not short) and c >= 1 and PFD:
                for _ in range((PFD + 2) // 3): touch()
            if short and c == 1:
                e(f"s_lshl_b32 s{sTmp}, s{sLw}, 11")
                e(f"s_add_u32 m0, s{sTmp}, {Vs(3)}\ns_add_u32 s{sTmp}, s{sTmp}, 8192")
                e(f"buffer_load_dwordx4 v{vLane16}, s[{sKV}:{sKV+3}], s{sTmp} offen lds")
                e(f"buffer_load_dwordx4 v{vLane16}, s[{sKV}:{sKV+3}], s{sTmp} offen offset:1024 lds")
                q.extend([("V", 0)] * 2)
            if short and c == 2:
                e(f"s_and_b32 s{sTmp}, s{sLw}, 1\ns_add_u32 s{sTmp}, s{sTmp}, 4\ns_lshl_b32 s{sLds}, s{sTmp}, 14")
                e(f"s_lshr_b32 s{sTmp}, s{sLw}, 1\ns_lshl_b32 s{sTmp}, s{sTmp}, 13\ns_add_u32 s{sLds}, s{sLds}, s{sTmp}")
                e(f"s_add_u32 s{sG}, s{sLw}, 4\ns_sub_u32 s{sTmp2}, s{sLw}, 1\ns_cmp_lt_u32 s{sLw}, 2\ns_cselect_b32 s{sG}, s{sG}, s{sTmp2}")
                e(f"s_lshl_b32 s{sG}, s{sG}, 14\ns_add_u32 s{sG}, s{sG}, s{sTmp}")
                for ins in dma_g1() + dma_g2(): e(ins)
                q.extend([("E", -1)] * 8)
            i0 = 32 * c
            for i in range(i0, i0 + 6):
                for ins in wreads(i): e(ins)
            for i in range(i0, i0 + 32):
                rem = min(5, i0 + 31 - i)
                e(f"s_waitcnt lgkmcnt({2*rem})")
                e(mfma(O + (i % 4) * 16, F + (i % 8) * 4, XN + (i // 4) * 4))
                if i + 6 < i0 + 32:
                    for ins in wreads(i + 6): e(ins)
        stamp(2)
        e(f"s_mov_b32 s{sPos}, 0\nv_mov_b32 v{vR}, v{vLane16}")
        for s_ in range(8): e(kread(s_, s_))
        e(f"s_mov_b32 s{sTmp}, {f2u(QSCALE):#x}")
        e("s_nop 7")
        for s_ in range(8):
            for j in range(4):
                r = O + s_ * 8 + 2 * j
                e(f"v_mul_f32 v{r}, s{sTmp}, v{r}\nv_mul_f32 v{r+1}, s{sTmp}, v{r+1}")
            for j in range(4):
                r = O + s_ * 8 + 2 * j
                e(f"v_cvt_pk_bf16_f32 v{Q + s_*4 + j}, v{r}, v{r+1}")
        for r in range(64): e(f"v_mov_b32 v{O+r}, 0")
        e(f"v_mov_b32 v{vLp[0]}, 0")
        e("s_waitcnt lgkmcnt(0)")
        for s_ in range(8):
            e(mfma(S[0], F + s_ * 4, Q + s_ * 4, "0" if s_ == 0 else None))
        e(f"s_mov_b32 s{sPos}, 16384\nv_add_u32 v{vR}, s{sPos}, v{vLane16}")
        for s_ in range(7): e(kread(s_, s_))
        e("s_nop 15")
        lnm = tag + "_nomask0"
        e(f"s_cmp_lg_u32 s{sJ}, 0\ns_cbranch_scc1 {lnm}")
        mask(0)
        a.lab(lnm)
        rowmax(0, vT0)
        for r in range(16): e(f"v_sub_f32 v{S[0]+r}, v{S[0]+r}, v{vT0}")
        for r in range(16): e(f"v_sub_f32 v{MN+r}, 0, v{vT0}")
        LOOP, ODD, TODD, TEVEN, LD = [tag + x for x in ("_loop", "_odd", "_todd", "_teven", "_ld")]
        bar = (lambda: e("s_waitcnt vmcnt(8)\ns_barrier")) if short else (lambda: e("s_barrier"))
        inloop[0] = True
        if NOBAR: bar = lambda: None
        bar()
        stamp(3)
        slot(0, False, dma_g1() if short else None, check=False, pf=(not short) and PFD)
        e(f"s_cmp_eq_u32 s{sJ}, 0\ns_cbranch_scc1 {TODD}")
        e(f"s_mov_b32 s{sN}, 1\ns_branch {ODD}")
        a.lab(LOOP)
        bar()
        l1 = a.newlab(tag + "_nm")
        e(f"s_cmp_lg_u32 s{sN}, s{sJ}\ns_cbranch_scc1 {l1}")
        mask(0)
        a.lab(l1)
        slot(0, True, dma_g1() if short else None, pf=(not short) and PFD)
        e(f"s_cmp_eq_u32 s{sN}, s{sJ}\ns_cbranch_scc1 {TODD}")
        e(f"s_add_u32 s{sN}, s{sN}, 1")
        a.lab(ODD)
        l2 = a.newlab(tag + "_nm")
        e(f"s_cmp_lg_u32 s{sN}, s{sJ}\ns_cbranch_scc1 {l2}")
        mask(1)
        a.lab(l2)
        slot(1, True, dma_g2() if short else None, pf=(not short) and PFD)
        e(f"s_cmp_eq_u32 s{sN}, s{sJ}\ns_cbranch_scc1 {TEVEN}")
        e(f"s_add_u32 s{sN}, s{sN}, 1\ns_branch {LOOP}")
        FIN = tag + "_fin"
        a.lab(TODD)
        pvonly(0)
        if short:
            for ins in dma_g2(): e(ins)
        e(f"s_branch {FIN}")
        a.lab(TEVEN)
        bar()
        e(f"v_mov_b32 v{vLp[1]}, v{vLp[0]}")
        pvonly(1)
        if short:
            for ins in dma_g1() + dma_g2(): e(ins)
        a.lab(FIN)
        stamp(4)
        if short:
            e(f"s_add_u32 s{sB}, s{sJ}, 3\ns_lshr_b32 s{sB}, s{sB}, 1")
            a.lab(LD)
            le = tag + "_ldend"
            e(f"s_cmp_gt_u32 s{sB}, s{sBL}\ns_cbranch_scc1 {le}")
            bar()
            for ins in dma_g1() + dma_g2(): e(ins)
            e(f"s_add_u32 s{sB}, s{sB}, 1\ns_branch {LD}")
            a.lab(le)
        stamp(5)
        epilogue()
        for rb in rare_blocks: rare(*rb)
        del rare_blocks[:]

    wave_code(False)
    a.lab(lshort)
    wave_code(True)
    a.lab(done)
    e("s_endpgm")
    return kernel_desc(name, 256)
```

```python
import sys, importlib
from asmlib import *

NAME = "recurrent_scan__compressed_kv_cla__mixer_s_mlp__prompt"
HDR = open("cdna_kernels/%s.s.ref" % NAME).read().split("\n")
HDR = [l for l in HDR if l.startswith(";") and "@launch" not in l and "Override launch" not in l and "grid=ceil" not in l]
HDR = HDR[:16]

def emit(path, kernels):
    a = Asm()
    descs = []
    seen = set()
    for g, label, grid, block, lds in kernels:
        if label in seen: continue
        seen.add(label)
        descs.append(g(a, label))
    out = list(HDR)
    for g, label, grid, block, lds in kernels:
        out.append(f"; @launch kernel={label} grid=({grid},1,1) block=({block},1,1) lds={lds}")
    out.append('.amdgcn_target "amdgcn-amd-amdhsa--gfx950"')
    out.append(".text")
    txt = "\n".join(out) + "\n" + a.text() + '.section .rodata,"a"\n' + "".join(descs)
    open(path, "w").write(txt)
    return txt

def table():
    import k1, k2
    t = {"k1": (k1.gen_k1, "kv_kernel", 256, 512, 163840),
         "k2": (k2.gen_k2, "attn_kernel", 256, 512, 163840),
         "k2d": (lambda a, n: k2.gen_k2(a, n, dbg=True), "attn_kernel", 256, 512, 163840)}
    for mod, key in (("k0", "k0"), ("k3", "k3"), ("kb", "kb")):
        try:
            m = importlib.import_module(mod)
            t.update(m.TABLE)
        except ModuleNotFoundError:
            pass
    return t

if __name__ == "__main__":
    t = table()
    emit(sys.argv[1], [t[k] for k in sys.argv[2].split(",")])
```

```python
import sys, importlib
from asmlib import *

import os
TL = int(os.environ.get("TL", 0))
NAME = "recurrent_scan__compressed_kv_cla__mixer_s_mlp__prompt"
HDR = open("cdna_kernels/%s.s.ref" % NAME).read().split("\n")
HDR = [l for l in HDR if l.startswith(";") and "@launch" not in l and "Override launch" not in l and "grid=ceil" not in l]
HDR = HDR[:16]

def emit(path, kernels):
    a = Asm()
    descs = []
    seen = set()
    for g, label, grid, block, lds in kernels:
        if label in seen: continue
        seen.add(label)
        n0 = len(a.L)
        descs.append(g(a, label))
        if TL:
            body = a.L[n0:]
            del a.L[n0:]
            for ln in body:
                if ln.strip() == "s_endpgm":
                    a.L.append(f"  s_branch {label}_tl")
                else:
                    a.L.append(ln)
                if ln.strip() == label + ":":
                    a.e("s_memrealtime s[96:97]\nv_lshrrev_b32 v1, 6, v0\ns_nop 1\nv_readfirstlane_b32 s100, v1")
            a.lab(label + "_tl")
            k = len(seen) - 1
            a.e(f"""s_waitcnt vmcnt(0) lgkmcnt(0)
s_memrealtime s[98:99]
s_load_dwordx2 s[4:5], s[0:1], 104
s_waitcnt lgkmcnt(0)
s_add_u32 s8, s4, {192*MB + k*65536:#x}
s_addc_u32 s9, s5, 0
s_mov_b32 s10, 65536
s_mov_b32 s11, 0x00020000
s_lshl_b32 s12, s2, 3
s_add_u32 s12, s12, s100
s_lshl_b32 s12, s12, 4
s_mov_b64 exec, 1
v_mov_b32 v0, 0
v_mov_b32 v4, s96
v_mov_b32 v5, s97
v_mov_b32 v6, s98
v_mov_b32 v7, s99
buffer_store_dwordx4 v[4:7], v0, s[8:11], s12 offen
s_waitcnt vmcnt(0)
s_endpgm""")
    out = list(HDR)
    for g, label, grid, block, lds in kernels:
        out.append(f"; @launch kernel={label} grid=({grid},1,1) block=({block},1,1) lds={lds}")
    out.append('.amdgcn_target "amdgcn-amd-amdhsa--gfx950"')
    out.append(".text")
    txt = "\n".join(out) + "\n" + a.text() + '.section .rodata,"a"\n' + "".join(descs)
    open(path, "w").write(txt)
    return txt

def table():
    import k1, k2
    t = {"k1": (k1.gen_k1, "kv_kernel", 256, 512, 163840),
         "k2": (k2.gen_k2, "attn_kernel", 256, 512, 163840),
         "k2d": (lambda a, n: k2.gen_k2(a, n, dbg=True), "attn_kernel", 256, 512, 163840)}
    for mod, key in (("k0", "k0"), ("k3", "k3"), ("kb", "kb"), ("l1", "l1")):
        try:
            m = importlib.import_module(mod)
            t.update(m.TABLE)
        except ModuleNotFoundError:
            pass
    return t

if __name__ == "__main__":
    t = table()
    emit(sys.argv[1], [t[k] for k in sys.argv[2].split(",")])
```
